```python
import torch

def _softmax(x, axis=-1):
    return torch.softmax(x, dim=axis)
def _gelu(x):
    return torch.nn.functional.gelu(x, approximate="tanh")
def _silu(x):
    return torch.nn.functional.silu(x)
def _sigmoid(x):
    return torch.sigmoid(x)
def _layernorm(x, axis=-1, eps=1e-5):
    m = x.mean(dim=axis, keepdim=True)
    v = x.var(dim=axis, keepdim=True, unbiased=False)
    return (x - m) / torch.sqrt(v + eps)
def _scatter_add(tgt, idx, src, axis=0):
    return tgt.clone().index_add_(axis, idx, src)
def _segment_sum(src, seg, n):
    out = torch.zeros((n,) + src.shape[1:], dtype=src.dtype)
    return out.index_add_(0, seg, src)
def _pad(x, pw):
    flat = tuple(v for pair in reversed(pw) for v in pair)
    return torch.nn.functional.pad(x, flat)

kernel_name = 'concat_heads__softmax_full_mha__ssm_conv_s5__prompt'

def setup_inputs():

    _w = (lambda a: (lambda t: t.to(torch.bfloat16) if t.is_floating_point() else t)(torch.as_tensor(a)))
    def _A_setup():
        B, S, D = 1, 2048, 640
        return {
            "x": _w((lambda *s: torch.randn(*s, dtype=torch.bfloat16) * 0.2)(B, S, D)),
            "wqkv": _w((lambda *s: torch.randn(*s, dtype=torch.bfloat16) * 0.2)(D, 3 * D)),
            "wo": _w((lambda *s: torch.randn(*s, dtype=torch.bfloat16) * 0.05)(D, D)),
        }
    _A_in = _A_setup()

    def _B_setup():
        B, S, D = 1, 2048, 640
        P = D
        Lambda_re = -0.5 * (lambda _x: torch.exp(torch.as_tensor(_x)))((lambda *s: torch.randn(*s, dtype=torch.bfloat16) * 0.8)(P))
        Lambda_im = (lambda *s: torch.randn(*s, dtype=torch.bfloat16) * 0.8)(P) * 1.0
        B_re = (lambda *s: torch.randn(*s, dtype=torch.bfloat16) * 0.8)(P, D) * (D ** -0.5)
        B_im = (lambda *s: torch.randn(*s, dtype=torch.bfloat16) * 0.8)(P, D) * (D ** -0.5)
        C_re = (lambda *s: torch.randn(*s, dtype=torch.bfloat16) * 0.8)(D, P) * (P ** -0.5)
        C_im = (lambda *s: torch.randn(*s, dtype=torch.bfloat16) * 0.8)(D, P) * (P ** -0.5)
        log_dt = (lambda *s: torch.randn(*s, dtype=torch.bfloat16) * 0.8)(P) * 0.3 - 2.0
        Dskip = (lambda *s: torch.randn(*s, dtype=torch.bfloat16) * 0.8)(D)
        return {
            "x": _w((lambda *s: torch.randn(*s, dtype=torch.bfloat16) * 0.05)(B, S, D)),
            "Lambda_re": _w(Lambda_re),
            "Lambda_im": _w(Lambda_im),
            "B_re": _w(B_re),
            "B_im": _w(B_im),
            "C_re": _w(C_re),
            "C_im": _w(C_im),
            "log_dt": _w(log_dt),
            "Dskip": _w(Dskip),
        }
    _B_in = _B_setup()

    return {
        "A_x": _A_in["x"],
        "A_wqkv": _A_in["wqkv"],
        "A_wo": _A_in["wo"],
        "B_x": _B_in["x"],
        "B_Lambda_re": _B_in["Lambda_re"],
        "B_Lambda_im": _B_in["Lambda_im"],
        "B_B_re": _B_in["B_re"],
        "B_B_im": _B_in["B_im"],
        "B_C_re": _B_in["C_re"],
        "B_C_im": _B_in["C_im"],
        "B_log_dt": _B_in["log_dt"],
        "B_Dskip": _B_in["Dskip"],
    }

def reference(A_x, A_wqkv, A_wo, B_x, B_Lambda_re, B_Lambda_im, B_B_re, B_B_im, B_C_re, B_C_im, B_log_dt, B_Dskip):
    def _A_ref(x, wqkv, wo):
        B, S, D = x.shape
        H = 32; Dh = D // H
        qkv = (lambda x, *d: x.permute(*d))((x @ wqkv).reshape(B, S, 3, H, Dh), 2, 0, 3, 1, 4)
        q, k, v = qkv[0], qkv[1], qkv[2]
        scale = Dh ** -0.5
        scores = torch.einsum("bhqd,bhkd->bhqk", q, k) * scale
        p = _softmax(scores, axis=-1)
        o = torch.einsum("bhqk,bhkd->bhqd", p, v)
        return (lambda x, *d: x.permute(*d))(o, 0, 2, 1, 3).reshape(B, S, D) @ wo

    def _B_ref(x, Lambda_re, Lambda_im, B_re, B_im, C_re, C_im, log_dt, Dskip):
        Bsz, L, H = x.shape
        Lam = Lambda_re + 1j * Lambda_im
        Bmat = B_re + 1j * B_im
        Cmat = C_re + 1j * C_im
        dt = torch.exp(log_dt)
        Lam_bar = torch.exp(dt * Lam)
        B_bar = ((Lam_bar - 1.0) / Lam)[:, None] * Bmat
        Bu = torch.einsum("bld,pd->blp", x + 0j, B_bar)
        h = torch.zeros_like(Bu[:, 0, :])
        hs = []
        for t in range(L):
            h = Lam_bar[None, :] * h + Bu[:, t, :]
            hs.append(h)
        hseq = torch.stack(hs, 1)
        y = 2.0 * torch.einsum("blp,dp->bld", hseq, Cmat).real + x * Dskip[None, None, :]
        return y

    a = _A_ref(A_x, A_wqkv, A_wo)
    b = _B_ref(B_x, B_Lambda_re, B_Lambda_im, B_B_re, B_B_im, B_C_re, B_C_im, B_log_dt, B_Dskip)
    return torch.concatenate([a, b], axis=-1)
```

```python
import struct
class A:
    def __init__(self): self.L = []
    def __call__(self, s=""):
        for line in s.split("\n"):
            line = line.strip()
            if line: self.L.append(("" if line.endswith(":") else "    ") + line)
    def c(self, s): self.L.append("    ; " + s)
    def text(self): return "\n".join(self.L) + "\n"
def vr(a, n=1): return f"v{a}" if n == 1 else f"v[{a}:{a+n-1}]"
def sr(a, n=1): return f"s{a}" if n == 1 else f"s[{a}:{a+n-1}]"
def f32(x): return "0x%08x" % struct.unpack("<I", struct.pack("<f", x))[0]

KA = dict(xA=0, wqkv=8, wo=16, xB=24, Lre=32, Lim=40, Bre=48, Bim=56, Cre=64, Cim=72, logdt=80, Dskip=88, out=96, dbg=104, ws=112)
SZ = dict(xA=2621440, wqkv=2457600, wo=819200, xB=2621440, Lre=1280, Lim=1280, Bre=819200, Bim=819200, Cre=819200, Cim=819200,
          logdt=1280, Dskip=1280, out=10485760, dbg=256, ws=0x1000000)
WS_QK = 0
WS_V  = 0x500000
WS_O  = 0x780000
WS_H  = 0xA00000
WS_E  = 0xF00000
WS_F  = 0xF30000

def load_ptrs(a, pairs):
    for name, s in pairs:
        a(f"s_load_dwordx2 {sr(s,2)}, s[0:1], {KA[name]}")
def finish_srds(a, pairs):
    for name, s in pairs:
        a(f"s_mov_b32 s{s+2}, {SZ[name]}")
        a(f"s_mov_b32 s{s+3}, 0x00020000")
def kernel_head(name):
    return f".globl {name}\n.p2align 8\n.type {name},@function\n{name}:\n"
def kernel_desc(name, nv, ns=96):
    acc = (nv + 3) // 4 * 4
    return f""".p2align 6
.amdhsa_kernel {name}
  .amdhsa_next_free_vgpr {nv}
  .amdhsa_next_free_sgpr {ns}
  .amdhsa_accum_offset {acc}
  .amdhsa_group_segment_fixed_size 0
  .amdhsa_kernarg_size 120
  .amdhsa_user_sgpr_count 2
  .amdhsa_user_sgpr_kernarg_segment_ptr 1
  .amdhsa_system_sgpr_workgroup_id_x 1
.end_amdhsa_kernel
"""

import os
STAMPS = os.environ.get("STAMPS", "0") == "1"
if STAMPS: SZ["ws"] = 0x2000000
def stamp(a, i):
    if STAMPS:
        a(f"s_memrealtime s[{80+2*i}:{81+2*i}]")
        a(f"s_memtime s[{60+2*i}:{61+2*i}]")
        a("s_waitcnt lgkmcnt(0)")
def stamp_init(a):
    if STAMPS:
        for i in range(8): a(f"s_mov_b32 s{80+2*i}, 0")
def stamp_flush(a, kidx, srd, wave_sreg, wg_sreg="s2"):
    if STAMPS:
        a("s_waitcnt vmcnt(0)")
        stamp(a, 7)
        for i in range(8): a(f"v_mov_b32 v{24+i}, s{80+2*i}")
        for i in range(8): a(f"v_mov_b32 v{32+i}, s{60+2*i}")
        a(f"s_lshl_b32 s79, {wg_sreg}, 9")
        a(f"s_lshl_b32 s78, {wave_sreg}, 6")
        a(f"s_add_u32 s79, s79, s78")
        a(f"s_add_u32 s79, s79, {0x1000000 + kidx*0x40000}")
        a("v_mov_b32 v20, 0")
        a("s_mov_b64 exec, 1")
        for j in range(4):
            a(f"buffer_store_dwordx4 v[{24+4*j}:{27+4*j}], v20, {sr(srd,4)}, s79 offen offset:{16*j}")
        a("s_mov_b64 exec, -1")
```

```python
import re, sys
TRANS = ("v_exp_", "v_log_", "v_rcp_", "v_rsq_", "v_sqrt_", "v_sin_", "v_cos_")
def regs(op):
    op = op.strip()
    op = op.lstrip("-")
    if op.startswith("abs(") or op.startswith("neg("): op = op[4:-1]
    if op.startswith("|"): op = op.strip("|")
    m = re.fullmatch(r"([vsa])(\d+)", op)
    if m: return {(m.group(1), int(m.group(2)))}
    m = re.fullmatch(r"([vsa])\[(\d+):(\d+)\]", op)
    if m: return {(m.group(1), i) for i in range(int(m.group(2)), int(m.group(3)) + 1)}
    if op == "vcc": return {("s", "vcc")}
    if op in ("vcc_lo", "vcc_hi"): return {("s", "vcc")}
    if op == "exec": return {("s", "exec")}
    if op == "m0": return {("s", "m0")}
    return set()
def passes(mn):
    if "32x32x16" in mn or "32x32x8" in mn: return 8
    if "16x16x32" in mn or "16x16x16" in mn: return 4
    if "_2b_" in mn: return 16
    raise ValueError(mn)
class I:
    def __init__(s, text, ln):
        s.text = text; s.ln = ln
        t = text.split(";")[0].strip()
        p = t.split(None, 1)
        s.mn = p[0]
        rest = p[1] if len(p) > 1 else ""
        ops = [o.strip() for o in re.split(r",(?![^\[]*\])", rest)] if rest else []
        s.mods = ""
        if ops:
            q = ops[-1].split(None, 1)
            if len(q) > 1: ops[-1] = q[0]; s.mods = q[1]
        s.ops = ops
        mn = s.mn
        s.ws = 1
        if mn == "s_nop": s.ws = int(ops[0], 0) + 1
        s.kind = "other"; s.w = set(); s.r = set()
        R = [regs(o) for o in ops]
        U = lambda l: set().union(*l) if l else set()
        if mn.startswith("v_mfma") or mn.startswith("v_smfmac"):
            s.kind = "mfma"; s.w = R[0]; s.A = R[1]; s.B = R[2]; s.C = R[3]; s.r = U(R[1:]); s.p = passes(mn)
        elif mn.startswith("v_"):
            s.kind = "valu"
            s.trans = mn.startswith(TRANS)
            if mn.startswith("v_permlane") and "swap" in mn:
                s.w = R[0] | R[1]; s.r = R[0] | R[1]
            elif mn.startswith(("v_add_co", "v_sub_co", "v_addc_co", "v_subb_co", "v_div_scale", "v_mad_u64")):
                s.w = R[0] | R[1]; s.r = U(R[2:])
            elif mn == "v_nop": pass
            else:
                s.w = R[0]; s.r = U(R[1:])
                if mn.startswith(("v_fmac", "v_pk_fmac", "v_writelane")) or "UNUSED_PRESERVE" in s.mods or "_d16" in mn: s.r |= R[0]
                if mn.startswith("v_cndmask") and len(ops) == 3: s.r |= {("s", "vcc")}
            s.dpp = any(x in s.mods for x in ("quad_perm", "row_", "wave_", "dpp"))
        elif mn.startswith(("buffer_", "global_", "flat_")):
            s.kind = "vmem"
            s.lds = " lds" in (" " + s.mods) or "load_lds" in mn
            s.store = "store" in mn or "atomic" in mn
            if mn in ("buffer_inv", "buffer_wbl2"): pass
            elif s.lds: s.r = U(R) | {("s", "m0")}
            elif "store" in mn:
                s.r = U(R); s.data = R[0] if mn.startswith("buffer") else R[1]
            elif "atomic" in mn:
                s.r = U(R)
                if "sc0" in s.mods: s.w = R[0]
                s.data = set()
            else: s.w = R[0]; s.r = U(R[1:])
        elif mn.startswith("ds_"):
            s.kind = "ds"
            if mn.startswith(("ds_read", "ds_bpermute", "ds_permute", "ds_swizzle")) or "_rtn" in mn: s.w = R[0]; s.r = U(R[1:])
            else: s.r = U(R)
        elif mn.startswith("s_"):
            s.kind = "salu"
            if mn.startswith(("s_cmp", "s_cbranch", "s_branch", "s_waitcnt", "s_barrier", "s_nop", "s_endpgm", "s_setprio", "s_sleep", "s_bitcmp")):
                s.r = U(R)
            else:
                s.w = R[0] if R else set(); s.r = U(R[1:])
                if "saveexec" in mn: s.w = s.w | {("s", "exec")}
def parse(text):
    ins = []; labels = {}
    for ln, line in enumerate(text.splitlines(), 1):
        t = line.split(";")[0].strip()
        if not t or t.startswith("."): continue
        m = re.fullmatch(r"([A-Za-z_][\w.$]*):", t)
        if m: labels[m.group(1)] = len(ins); continue
        ins.append(I(line.strip(), ln))
    return ins, labels
def need(p, c):
    n = 0; why = ""
    def up(v, w):
        nonlocal n, why
        if v > n: n = v; why = w
    vw = {x for x in p.w if x[0] in "va"}; sw = {x for x in p.w if x[0] == "s"}
    if p.kind == "valu":
        if c.kind == "mfma" and vw & c.r: up(2, "valu->mfma src")
        if c.kind == "valu":
            if p.trans and not c.trans and vw & c.r: up(1, "trans->valu")
            if c.mn.startswith(("v_readfirstlane", "v_readlane")) and vw & c.r: up(1, "valu->readlane")
            if c.mn.startswith("v_permlane") and vw & c.r: up(2, "valu->permlane")
            if c.dpp and vw & c.r: up(2, "valu->dpp")
            if sw & c.r: up(4 if c.mn.startswith(("v_readlane", "v_writelane", "v_div_fmas")) else 2, "valu sgpr->valu")
            if ("sdwa" in p.mn or "op_sel" in p.mods) and not p.mn.startswith("v_pk") and vw & (c.r | c.w): up(1, "sdwa/opsel->valu")
        if c.kind == "vmem" and sw & c.r: up(5, "valu sgpr->vmem")
        if c.kind == "mfma" and ("s", "exec") in sw: up(4, "valu exec->mfma")
    if p.kind == "mfma":
        t1 = {4: 8, 8: 12, 16: 20}[p.p]; t2 = {4: 6, 8: 10, 16: 18}[p.p]; t3 = {4: 3, 8: 7, 16: 15}[p.p]
        if c.kind == "mfma":
            if p.w & (c.A | c.B): up(t1, "mfma D->mfma A/B")
            if p.w & c.C and not (p.w == c.C and p.p == c.p): up(t2, "mfma D->mfma C overlap")
            if p.w & c.w and not (p.w & c.C): up(0, "")
        elif c.kind == "valu":
            if p.w & (c.r | c.w): up(t1, "mfma D->valu")
            if p.C & c.w: up(t3, "mfma C WAR valu")
        elif c.kind in ("vmem", "ds"):
            if p.w & (c.r | c.w): up(t1, "mfma D->mem")
    if p.kind == "salu" and ("s", "m0") in sw and c.kind == "vmem" and getattr(c, "lds", False): up(1, "m0->dma")
    if p.kind == "vmem" and "store" in p.mn and ("x3" in p.mn or "x4" in p.mn):
        if p.data & c.w: up(2 if c.kind == "valu" else 1, "wide store WAR")
    return n, why
def check(text):
    ins, labels = parse(text)
    errs = []
    def succ(i):
        c = ins[i]
        if c.mn == "s_endpgm": return []
        if c.mn == "s_branch": return [labels[c.ops[0]]]
        if c.mn.startswith("s_cbranch"): return [i + 1, labels[c.ops[0]]]
        if c.mn.startswith(("s_setpc", "s_swappc")): return []
        return [i + 1]
    for i, p in enumerate(ins):
        if p.kind not in ("valu", "mfma", "salu", "vmem"): continue
        if p.kind == "salu" and ("s", "m0") not in p.w: continue
        if p.kind == "vmem" and "store" not in p.mn: continue
        seen = {}
        st = [(j, 0) for j in succ(i)]
        while st:
            j, d = st.pop()
            if j >= len(ins) or d >= 20: continue
            if j in seen and seen[j] <= d: continue
            seen[j] = d
            c = ins[j]
            n, why = need(p, c)
            if n > d: errs.append(f"line {p.ln}: '{p.text}' -> line {c.ln}: '{c.text}': need {n} have {d} ({why})")
            for k in succ(j): st.append((k, d + c.ws))
    return errs
if __name__ == "__main__":
    e = check(open(sys.argv[1]).read())
    print("\n".join(e) if e else "hazcheck: clean")
```

```python
from common import *
import math
QSCALE = math.log2(math.e) * (20 ** -0.5)
NS = int(os.environ.get('K1NS', '4'))
RAMPSTEP = int(os.environ.get('K1RAMP', '2'))
def gen_k1():
    a = A()
    a(f".set NS, {NS}")
    SX, SW, SWS = 4, 8, 12
    pairs = [("xA", SX), ("wqkv", SW), ("ws", SWS)]
    a("s_cmp_ge_u32 s2, 256")
    a("s_cbranch_scc1 K1_END")
    stamp_init(a); stamp(a, 0)
    load_ptrs(a, pairs)
    a("""
    v_lshrrev_b32 v1, 6, v0
    s_and_b32 s21, s2, 7
    s_lshr_b32 s22, s2, 3
    v_readfirstlane_b32 s18, v1
    s_and_b32 s16, s21, 1
    s_lshl_b32 s16, s16, 3
    s_and_b32 s23, s22, 7
    s_add_u32 s16, s16, s23          ; rb
    s_lshr_b32 s17, s21, 1
    s_lshl_b32 s17, s17, 2
    s_lshr_b32 s23, s22, 3
    s_add_u32 s17, s17, s23          ; cb
    v_and_b32 v1, 63, v0             ; lane
    """)
    finish_srds(a, pairs)
    a("s_cmp_eq_u32 s17, 15")
    a("s_cbranch_scc1 K1_ZERO")
    a("s_cmp_lt_u32 s18, 4")
    a("s_cbranch_scc1 K1_COMPUTE")
    a("""
    s_sub_u32 s18, s18, 4            ; lw
    v_lshrrev_b32 v2, 3, v1          ; r
    v_and_b32 v3, 7, v1              ; j
    v_lshrrev_b32 v4, 1, v2
    v_xor_b32 v3, v3, v4
    v_lshlrev_b32 v3, 4, v3
    v_mul_u32_u24 v2, 1280, v2
    v_add_u32 v10, v2, v3            ; voffE
    v_xor_b32 v11, 64, v10           ; voffO
    v_lshrrev_b32 v2, 4, v1          ; r
    v_and_b32 v3, 15, v1
    v_lshlrev_b32 v4, 2, v2
    v_xor_b32 v3, v3, v4
    v_lshlrev_b32 v3, 4, v3
    v_mul_u32_u24 v2, 3840, v2
    v_add_u32 v12, v2, v3            ; voffW
    s_lshl_b32 s24, s16, 7
    s_lshl_b32 s23, s18, 5
    s_add_u32 s24, s24, s23
    s_mul_i32 s24, s24, 1280         ; sX
    s_mul_i32 s25, s18, 16*3840
    s_lshl_b32 s23, s17, 8
    s_add_u32 s25, s25, s23          ; sW
    s_lshl_b32 s26, s18, 12
    s_add_u32 s27, s26, NS*32768
    s_waitcnt lgkmcnt(0)
    """)
    def issue():
        if os.environ.get("NOLOAD"): return
        for q in range(4):
            a(f"s_add_u32 m0, s26, {q*1024}")
            a(f"s_add_u32 s23, s24, {q*10240}")
            a(f"buffer_load_dwordx4 v{10+(q&1)}, {sr(SX,4)}, s23 offen lds")
        for q in range(4):
            a(f"s_add_u32 m0, s26, {16384+q*1024}")
            a(f"s_add_u32 s23, s25, {q*15360}")
            a(f"buffer_load_dwordx4 v12, {sr(SW,4)}, s23 offen lds")
        a("""
        s_add_u32 s24, s24, 128
        s_add_u32 s25, s25, 245760
        s_add_u32 s26, s26, 32768
        s_cmp_eq_u32 s26, s27
        s_cbranch_scc0 K1_NOWRAP_%d
        s_sub_u32 s26, s26, NS*32768
        K1_NOWRAP_%d:
        """ % (issue.n, issue.n))
        issue.n += 1
    issue.n = 0
    D = NS - 1
    ramp = [min(10, 2 + min(i * RAMPSTEP, i + D - 2)) for i in range(10)]
    issued = 0
    for i in range(10):
        while issued < ramp[i]:
            issue(); issued += 1
        if i == 0: stamp(a, 1)
        a(f"s_waitcnt vmcnt({8 * (issued - 1 - i)})")
        if i == 0: stamp(a, 2)
        if i == 8: stamp(a, 3)
        if i < 9: a("s_barrier")
    stamp(a, 4)
    a("s_barrier")
    a("s_add_u32 s18, s18, 4")
    stamp_flush(a, 0, SWS, "s18", sel=(0, 2), slot=3)
    a("s_endpgm")
    a("""
    K1_ZERO:
    s_and_b32 s21, s21, 1
    s_lshl_b32 s21, s21, 3
    s_and_b32 s22, s22, 7
    s_add_u32 s21, s21, s22          ; idx 0..15
    s_lshl_b32 s21, s21, 14
    s_add_u32 s21, s21, %d
    v_lshlrev_b32 v2, 4, v0
    v_mov_b32 v4, 0
    v_mov_b32 v5, 0
    v_mov_b32 v6, 0
    v_mov_b32 v7, 0
    s_waitcnt lgkmcnt(0)
    buffer_store_dwordx4 v[4:7], v2, %s, s21 offen
    s_add_u32 s21, s21, 8192
    buffer_store_dwordx4 v[4:7], v2, %s, s21 offen
    s_endpgm
    """ % (WS_E, sr(SWS,4), sr(SWS,4)))
    ACC = 64
    a("""
    K1_COMPUTE:
    s_and_b32 s24, s18, 1            ; wm
    s_lshr_b32 s25, s18, 1           ; wn
    v_and_b32 v14, 31, v1            ; row
    v_lshrrev_b32 v15, 5, v1         ; hh
    v_bfe_u32 v2, v1, 1, 3           ; (row>>1)&7
    v_xor_b32 v2, v2, v15
    v_lshlrev_b32 v2, 4, v2
    v_lshl_add_u32 v2, v14, 7, v2
    s_lshl_b32 s23, s24, 13
    v_add_u32 v2, s23, v2            ; + wm*8192
    v_xor_b32 v3, 32, v2
    v_xor_b32 v4, 64, v2
    v_xor_b32 v5, 96, v2
    v_bfe_u32 v8, v1, 2, 2           ; r
    v_bfe_u32 v9, v1, 4, 1           ; g&1
    v_bfe_u32 v10, v1, 1, 1          ; c>>1
    v_lshl_add_u32 v9, v9, 1, v10    ; 2(g&1)+(c>>1)
    s_lshl_b32 s23, s25, 3
    v_add_u32 v9, s23, v9
    v_lshlrev_b32 v10, 2, v8
    v_xor_b32 v9, v9, v10
    v_lshl_add_u32 v8, v15, 3, v8    ; 8*(g>>1)+r
    v_lshlrev_b32 v8, 8, v8
    v_lshl_add_u32 v8, v9, 4, v8
    v_and_b32 v10, 1, v1
    v_lshl_add_u32 v6, v10, 3, v8    ; vWb0
    v_xor_b32 v7, 64, v6
    """)
    for i in range(64): a(f"v_mov_b32 v{ACC+i}, 0")
    for i in range(32, 48): a(f"v_mov_b32 v{i}, 0")
    a("s_mov_b32 s20, 0")
    a("s_mov_b32 s19, 10")
    a("s_waitcnt lgkmcnt(0)")
    def reads(ks, st):
        X = 16 + 16 * st; W = 24 + 16 * st
        r = []
        for tt in range(2):
            r.append(f"ds_read_b128 {vr(X+4*tt,4)}, v{8+ks} offset:{tt*4096}")
            for kk in range(2):
                r.append(f"ds_read_b64_tr_b16 {vr(W+4*tt+2*kk,2)}, v{12+tt} offset:{16384+(16*ks+4*kk)*256}")
        return r
    def mfmas(st, vmode):
        X = 16 + 16 * st; W = 24 + 16 * st
        r = []
        for tt, ft in ((0, 0), (1, 0), (0, 1), (1, 1)):
            d = vr(ACC + 16 * (2 * tt + ft), 16)
            if vmode: r.append(f"v_mfma_f32_32x32x16_bf16 {d}, {vr(X+4*tt,4)}, {vr(W+4*ft,4)}, {d}")
            else:     r.append(f"v_mfma_f32_32x32x16_bf16 {d}, {vr(W+4*ft,4)}, {vr(X+4*tt,4)}, {d}")
        return r
    def group(mst, rks, vmode, extra=()):
        M = mfmas(mst, vmode); R = reads(rks, 1 - mst)
        if os.environ.get("NOMFMA"): M = ["s_nop 0"] * 4
        if os.environ.get("NOREAD"): R = []
        a(M[0]); [a(x) for x in R[:3]]
        a(M[1]); [a(x) for x in R[3:]]
        a(M[2]); [a(x) for x in extra]
        a(M[3])
        a("s_waitcnt lgkmcnt(0)")
    def loop(name, vmode):
        a(f"{name}:")
        a("s_barrier")
        group(1, 0, vmode)
        group(0, 1, vmode)
        group(1, 2, vmode, extra=["s_add_u32 s20, s20, 32768", "s_cmp_eq_u32 s20, NS*32768", "s_cselect_b32 s20, 0, s20",
                                  "v_add_u32 v8, s20, v2", "v_add_u32 v9, s20, v3", "v_add_u32 v10, s20, v4"])
        group(0, 3, vmode, extra=["v_add_u32 v11, s20, v5", "v_add_u32 v12, s20, v6", "v_add_u32 v13, s20, v7",
                                  "s_sub_u32 s19, s19, 1", "s_cmp_lg_u32 s19, 0"])
        a(f"s_cbranch_scc1 {name}")
        for m in mfmas(1, vmode): a(m)
        stamp(a, 3)
    for i in range(6): a(f"v_mov_b32 v{8+i}, v{2+i}")
    a("s_cmp_ge_u32 s17, 10")
    a("s_cbranch_scc1 K1_VLOOP")
    stamp(a, 1)
    loop("K1_QKLOOP", False)
    a(f"""
    v_lshlrev_b32 v2, 4, v14
    v_lshl_add_u32 v2, v15, 15, v2
    s_lshl_b32 s27, s17, 4
    s_lshl_b32 s23, s25, 3
    s_add_u32 s27, s27, s23
    s_lshl_b32 s27, s27, 15          ; (16cb+8wn)*32768
    s_lshl_b32 s23, s16, 11
    s_add_u32 s27, s27, s23
    s_lshl_b32 s23, s24, 10
    s_add_u32 s27, s27, s23
    s_nop 7
    """)
    for tt in range(2):
        for ft in range(2):
            d = ACC + 16 * (2 * tt + ft)
            P = 16 + 8 * ((2 * tt + ft) & 1) + 16 * tt
            for i in range(8): a(f"v_cvt_pk_bf16_f32 v{P+i}, v{d+2*i}, v{d+2*i+1}")
            a(f"s_add_u32 s23, s27, {4*ft*32768}")
            a(f"s_add_u32 s28, s27, {(4*ft+2)*32768}")
            a(f"v_permlane32_swap_b32 v{P+0}, v{P+2}")
            a(f"v_permlane32_swap_b32 v{P+1}, v{P+3}")
            a(f"v_permlane32_swap_b32 v{P+4}, v{P+6}")
            a(f"v_permlane32_swap_b32 v{P+5}, v{P+7}")
            a(f"buffer_store_dwordx4 {vr(P,4)}, v2, {sr(SWS,4)}, s23 offen offset:{tt*512}")
            a(f"buffer_store_dwordx4 {vr(P+4,4)}, v2, {sr(SWS,4)}, s28 offen offset:{tt*512}")
    stamp(a, 4)
    stamp_flush(a, 0, SWS, "s18", sel=(0, 3, 7), slot=0)
    a("s_endpgm")
    loop("K1_VLOOP", True)
    a(f"""
    s_sub_u32 s23, s17, 10
    s_lshl_b32 s23, s23, 7
    s_lshl_b32 s26, s25, 6
    s_add_u32 s23, s23, s26
    v_add_u32 v2, s23, v14           ; F (ft=0)
    v_add_u32 v3, 32, v2             ; F (ft=1)
    v_mul_u32_u24 v4, 3277, v2
    v_mul_u32_u24 v5, 3277, v3
    v_lshrrev_b32 v4, 16, v4         ; head
    v_lshrrev_b32 v5, 16, v5
    v_mul_u32_u24 v6, 20, v4
    v_mul_u32_u24 v7, 20, v5
    v_sub_u32 v2, v2, v6             ; d
    v_sub_u32 v3, v3, v7
    v_mul_u32_u24 v4, 81920, v4
    v_mul_u32_u24 v5, 81920, v5
    v_lshl_add_u32 v2, v2, 4, v4
    v_lshl_add_u32 v3, v3, 4, v5
    v_mul_u32_u24 v4, 320, v15
    v_add_u32 v2, v2, v4
    v_add_u32 v3, v3, v4
    s_lshl_b32 s27, s16, 2
    s_lshl_b32 s23, s24, 1
    s_add_u32 s27, s27, s23
    s_mul_i32 s27, s27, 1280
    s_add_u32 s27, s27, {WS_V}
    """)
    for tt in range(2):
        for ft in range(2):
            d = ACC + 16 * (2 * tt + ft)
            P = 16 + 8 * ((2 * tt + ft) & 1) + 16 * tt
            for i in range(8): a(f"v_cvt_pk_bf16_f32 v{P+i}, v{d+2*i}, v{d+2*i+1}")
            a(f"buffer_store_dwordx4 {vr(P,4)}, v{2+ft}, {sr(SWS,4)}, s27 offen offset:{tt*1280}")
            a(f"buffer_store_dwordx4 {vr(P+4,4)}, v{2+ft}, {sr(SWS,4)}, s27 offen offset:{tt*1280+640}")
    stamp(a, 4)
    stamp_flush(a, 0, SWS, "s18", sel=(0, 3, 7), slot=0)
    a("K1_END:")
    a("s_endpgm")
    return a.text(), 128
```

```python
from common import *
from k2a import gen_attn
NWG = 416 if not os.environ.get("NOSSM") else 256
def gen_k2():
    a = A()
    SWS = 12
    a(f"s_cmp_ge_u32 s2, {NWG}")
    a("s_cbranch_scc1 K2_END")
    stamp_init(a); stamp(a, 0)
    load_ptrs(a, [("ws", SWS)])
    a("""
    v_lshrrev_b32 v1, 6, v0
    s_nop 0
    v_readfirstlane_b32 s18, v1
    v_and_b32 v1, 63, v0
    """)
    finish_srds(a, [("ws", SWS)])
    if NWG > 256:
        a("s_cmp_ge_u32 s2, 256")
        a("s_cbranch_scc1 K2_SSM")
    gen_attn(a, SWS)
    if NWG > 256:
        from k2b import gen_ssm
        a("K2_SSM:")
        gen_ssm(a, SWS)
    a("K2_END:")
    a("s_endpgm")
    return a.text(), 128
```

```python
from common import *
import math
QSCALE = math.log2(math.e) * (20 ** -0.5)
SLOT = 22528
ONES = 3 * SLOT
VOTE = ONES + 320
SA, SB = 16, 32
NEGM = 48
O = 64
P = 80
Q0, Q1 = 88, 92
K0, K1 = 96, 94
V0, V1 = 100, 104
AK0, AK1, AV = 108, 109, 110
BK0, BK1, BV, MV = 111, 112, 113, 114
VDMA = 115
FLG = ONES + 10240
VFW, VFR, VFD, VFV = 116, 117, 118, 119
PRIO = eval(os.environ.get("APRIO", "{6: 2, 1: 1, 4: 0}"))
JARR = int(os.environ.get('JARR', '2')); JPOLL = int(os.environ.get('JPOLL', '4'))
def gen_attn(a, SWS):
    a("""
    s_and_b32 s16, s2, 7
    s_lshl_b32 s16, s16, 2
    s_bfe_u32 s21, s2, 0x20003
    s_add_u32 s16, s16, s21          ; head
    s_lshr_b32 s17, s2, 5            ; q block
    s_lshr_b32 s21, s16, 1
    s_mul_i32 s21, s21, 5            ; 5a
    s_and_b32 s22, s16, 1            ; odd
    s_mul_i32 s23, s22, 3
    s_add_u32 s23, s23, s21          ; first full octet (5a or 5a+3)
    s_add_u32 s24, s21, 2            ; tail octet
    v_lshlrev_b32 v%d, 4, v1
    """ % VDMA)
    for i in range(3):
        a(f"""
        s_mul_i32 s25, s18, 3
        s_add_u32 s25, s25, {i}
        s_min_u32 s25, s25, 21
        s_lshl_b32 s{36+i}, s25, 10
        s_lshr_b32 s26, s25, 2           ; plane
        s_add_u32 s27, s23, s26
        s_cmp_eq_u32 s26, 2
        s_cselect_b32 s27, s24, s27
        s_add_u32 s27, s27, 80
        s_lshl_b32 s27, s27, 15
        s_and_b32 s28, s25, 3
        s_lshl_b32 s28, s28, 10
        s_add_u32 s27, s27, s28          ; K src
        s_mul_i32 s28, s16, 81920
        s_add_u32 s28, s28, s{36+i}
        s_add_u32 s28, s28, {WS_V - 12288}
        s_cmp_lt_u32 s25, 12
        s_cselect_b32 s{40+i}, s27, s28
        s_cselect_b32 s{33+i}, 4, 10
        s_lshl_b32 s{33+i}, s{33+i}, 10
        """)
    a("s_waitcnt lgkmcnt(0)")
    def dma():
        for i in range(3):
            a(f"s_add_u32 m0, s39, s{36+i}")
            a(f"s_add_u32 s{30+i-1}, s{30+i-1}, s{33+i-1}" if i else "s_nop 0")
            a(f"buffer_load_dwordx4 v{VDMA}, {sr(SWS,4)}, s{30+i} offen lds")
        a("s_add_u32 s32, s32, s35")
        a(f"s_add_u32 s39, s39, {SLOT}")
        a(f"s_cmp_eq_u32 s39, {3*SLOT}")
        a("s_cselect_b32 s39, 0, s39")
    a("s_mov_b32 s44, 0              ; pass")
    a(f"""
    v_and_b32 v2, 31, v1             ; q / key / d
    v_lshrrev_b32 v3, 5, v1          ; hh
    v_lshlrev_b32 v4, 4, v2
    v_lshl_add_u32 v5, v3, 15, v4    ; hh*32768 + q*16
    s_lshl_b32 s50, s17, 12
    s_lshl_b32 s26, s18, 9
    s_add_u32 s50, s50, s26          ; token*16
    s_lshl_b32 s51, s23, 15
    s_add_u32 s51, s51, s50
    s_lshl_b32 s52, s24, 15
    s_add_u32 s52, s52, s50
    s_lshl_b32 s28, s22, 3
    s_add_u32 s52, s52, s28
    """)
    a("A_PASS:")
    for i in range(3): a(f"s_mov_b32 s{30+i}, s{40+i}")
    a("s_mov_b32 s39, 0")
    dma()
    a(f"buffer_load_dwordx4 v[8:11], v5, {sr(SWS,4)}, s51 offen")
    a(f"buffer_load_dwordx2 v[12:13], v4, {sr(SWS,4)}, s52 offen")
    dma()
    for i in range(16): a(f"v_mov_b32 v{O+i}, 0")
    a(f"""
    v_lshl_add_u32 v{BK0}, v3, 12, v4
    v_xor_b32 v6, s22, v3
    v_lshl_add_u32 v{BK1}, v6, 3, v4
    v_add_u32 v{BK1}, 8192, v{BK1}
    v_mul_u32_u24 v6, 320, v3
    v_add_u32 v6, v6, v4
    v_add_u32 v6, 12288, v6
    v_cmp_eq_u32 vcc, 20, v2
    v_mov_b32 v7, {ONES}
    v_mov_b32 v14, {ONES+16}
    v_cndmask_b32 v7, v14, v7, vcc
    v_cmp_gt_u32 vcc, 20, v2
    v_mov_b32 v14, 0x3f803f80
    v_mov_b32 v20, 0
    v_cndmask_b32 v{BV}, v7, v6, vcc
    v_cndmask_b32 v{MV}, 0, -1, vcc
    v_mov_b32 v15, v14
    v_mov_b32 v16, v14
    v_mov_b32 v17, v14
    v_mul_u32_u24 v6, 640, v1
    v_add_u32 v6, {ONES}, v6
    v_mov_b32 v18, 0
    v_mov_b32 v19, {VOTE}
    s_mov_b64 exec, 0xffff
    ds_write_b128 v6, v[14:17]
    ds_write_b128 v6, v[{O}:{O+3}] offset:16
    s_mov_b64 exec, 1
    ds_write_b32 v19, v18
    s_mov_b64 exec, -1
    s_lshl_b32 s29, s18, 8
    v_lshl_add_u32 v{VFW}, v1, 2, s29
    v_add_u32 v{VFW}, {FLG}, v{VFW}
    v_and_b32 v{VFR}, 7, v1
    v_lshlrev_b32 v{VFR}, 8, v{VFR}
    v_add_u32 v{VFR}, {FLG}, v{VFR}
    v_mov_b32 v{VFD}, 0
    ds_write_b32 v{VFW}, v{VFD}
    v_mov_b32 v{AK0}, v{BK0}
    v_mov_b32 v{AK1}, v{BK1}
    v_mov_b32 v{AV}, v{BV}
    """)
    for i in range(4): a(f"v_mov_b32 v{P+4+i}, 0")
    for i in range(4): a(f"v_mov_b32 v{V1+i}, 0")
    a(f"v_mov_b32 v{SB+14}, 0")
    a(f"v_mov_b32 v{SB+15}, 0")
    a(f"s_mov_b32 s29, {f32(QSCALE)}")
    a("s_waitcnt vmcnt(3)")
    for i in range(6):
        a(f"v_lshlrev_b32 v{20+2*i}, 16, v{8+i}")
        a(f"v_and_b32 v{21+2*i}, 0xffff0000, v{8+i}")
    for i in range(12): a(f"v_mul_f32 v{20+i}, s29, v{20+i}")
    for i in range(6): a(f"v_cvt_pk_bf16_f32 v{Q0+i}, v{20+2*i}, v{21+2*i}")
    a(f"""
    v_cmp_gt_u32 vcc, 32, v1
    s_nop 1
    v_cndmask_b32 v{Q1}, 0, v{Q1}, vcc
    v_cndmask_b32 v{Q1+1}, 0, v{Q1+1}, vcc
    s_waitcnt lgkmcnt(0)
    s_barrier
    """)
    stamp(a, 1)
    a(f"""
    ds_read_b64 {vr(K1,2)}, v{AK1}
    ds_read_b128 {vr(K0,4)}, v{AK0}
    s_cmp_lg_u32 s44, 0
    s_cbranch_scc1 A_HAVEMAX
    s_waitcnt lgkmcnt(0)
    v_mfma_f32_32x32x8_bf16 {vr(SA,16)}, {vr(K1,2)}, {vr(Q1,2)}, 0
    v_mfma_f32_32x32x16_bf16 {vr(SA,16)}, {vr(K0,4)}, {vr(Q0,4)}, {vr(SA,16)}
    s_nop 11
    """)
    a(f"v_max3_f32 v6, v{SA}, v{SA+1}, v{SA+2}")
    for i in range(3, 15, 2): a(f"v_max3_f32 v6, v6, v{SA+i}, v{SA+i+1}")
    a(f"""
    v_max_f32 v6, v6, v{SA+15}
    v_mov_b32 v7, v6
    s_nop 1
    v_permlane32_swap_b32 v6, v7
    v_max_f32 v6, v6, v7
    """)
    for i in range(16): a(f"v_sub_f32 v{NEGM+i}, 0, v6")
    a("A_HAVEMAX:")
    a(f"""
    s_waitcnt lgkmcnt(0)
    s_nop 0
    v_mfma_f32_32x32x8_bf16 {vr(SA,16)}, {vr(K1,2)}, {vr(Q1,2)}, {vr(NEGM,16)}
    v_mfma_f32_32x32x16_bf16 {vr(SA,16)}, {vr(K0,4)}, {vr(Q0,4)}, {vr(SA,16)}
    ds_read_b128 {vr(V0,4)}, v{AV}
    ds_read_b64 {vr(K1,2)}, v{AK1} offset:512
    ds_read_b128 {vr(K0,4)}, v{AK0} offset:512
    s_mov_b32 s45, 0
    s_mov_b32 s46, 0
    s_mov_b32 s53, 1
    s_waitcnt lgkmcnt(0)
    s_nop 5
    """)
    stamp(a, 2)
    a(".p2align 3")
    a("A_LOOP:")
    loop_start = len(a.L)
    order = []
    for j in range(8):
        order.append(("K1", j))
        if j == JARR: order.append(("arr", j))
        order.append(("K0", j))
        if j == JPOLL: order.append(("poll", j))
        order.append(("V1", j)); order.append(("V0", j))
    def cnt(after, need):
        ia = order.index(after); ib = order.index(need)
        return (ia - ib) % len(order)
    for j in range(8):
        cur = SA if j % 2 == 0 else SB
        nxt = SB if j % 2 == 0 else SA
        e = lambda k: a(f"v_exp_f32 v{cur+k}, v{cur+k}")
        c = lambda k: a(f"v_cvt_pk_bf16_f32 v{P+k}, v{cur+2*k}, v{cur+2*k+1}")
        kt = (j + 2) % 8
        jp = (j - 1) % 8
        e(0)
        a(f"v_cvt_pk_bf16_f32 v{P+7}, v{nxt+14}, v{nxt+15}")
        e(1)
        if j == 6:
            a(f"v_cmp_gt_u32 vcc, s53, v{VFV}")
        e(2)
        a(f"v_mfma_f32_32x32x8_bf16 {vr(nxt,16)}, {vr(K1,2)}, {vr(Q1,2)}, {vr(NEGM,16)}")
        if j == 6:
            a(f"""
            s_add_u32 s45, s45, {SLOT}
            s_cmp_eq_u32 s45, {3*SLOT}
            s_cselect_b32 s45, 0, s45
            s_cbranch_vccz A_SYNCED
            A_POLL:
            ds_read_b32 v{VFV}, v{VFR}
            s_waitcnt lgkmcnt(0)
            v_cmp_gt_u32 vcc, s53, v{VFV}
            s_cbranch_vccnz A_POLL
            A_SYNCED:
            s_cmp_gt_u32 s46, 5
            s_cbranch_scc1 A_NODMA
            """)
            dma()
            a(f"""
            A_NODMA:
            v_add_u32 v{AK1}, s45, v{BK1}
            v_add_u32 v{AK0}, s45, v{BK0}
            """)
        a(f"ds_read_b64 {vr(K1,2)}, v{AK1} offset:{kt*512}")
        last = ("K1", j)
        if j == JARR:
            a("s_waitcnt vmcnt(0)")
            a(f"ds_write_b32 v{VFW}, v{VFD}")
            last = ("arr", j)
        if j in PRIO: a(f"s_setprio {PRIO[j]}")
        a(f"s_waitcnt lgkmcnt({cnt(last, ('K0', jp))})")
        c(0); e(3); e(4); c(1); e(5); e(6)
        a(f"v_mfma_f32_32x32x16_bf16 {vr(nxt,16)}, {vr(K0,4)}, {vr(Q0,4)}, {vr(nxt,16)}")
        a(f"ds_read_b128 {vr(K0,4)}, v{AK0} offset:{kt*512}")
        last = ("K0", j)
        if j == JPOLL:
            a(f"ds_read_b32 v{VFV}, v{VFR}")
            last = ("poll", j)
        a(f"s_waitcnt lgkmcnt({cnt(last, ('V1', jp))})")
        c(2); e(7); e(8); c(3); e(9); e(10)
        a(f"v_mfma_f32_32x32x16_bf16 {vr(O,16)}, {vr(V1,4)}, {vr(P+4,4)}, {vr(O,16)}")
        a(f"ds_read_b128 {vr(V1,4)}, v{AV} offset:{j*1280+640}")
        a(f"s_waitcnt lgkmcnt({cnt(('V1', j), ('V0', jp))})")
        if j == 7:
            a(f"v_and_b32 v6, s45, v{MV}")
            a(f"v_add_u32 v{AV}, v6, v{BV}")
        if j == (JARR - 1) % 8:
            a(f"v_add_u32 v{VFD}, 1, v{VFD}")
        c(4); e(11); e(12); c(5); e(13); e(14)
        a(f"v_mfma_f32_32x32x16_bf16 {vr(O,16)}, {vr(V0,4)}, {vr(P,4)}, {vr(O,16)}")
        a(f"ds_read_b128 {vr(V0,4)}, v{AV} offset:{((j+1)%8)*1280}")
        if j == 7:
            a("s_add_u32 s53, s53, 1")
            a("s_add_u32 s46, s46, 1")
            a("s_cmp_lg_u32 s46, 8")
        w = cnt(('V0', j), ('K1', j))
        if j == JPOLL: w = min(w, cnt(('V0', j), ('poll', j))) if JPOLL == 5 else w
        a(f"s_waitcnt lgkmcnt({w})")
        c(6); e(15)
    X = os.environ.get("AEXP", "")
    body = a.L[loop_start:]
    if "nowait" in X: body = [l for l in body if "lgkmcnt(3)" not in l]
    if "noread" in X: body = [l for l in body if "ds_read" not in l]
    if "nobar" in X: body = [l for l in body if "s_barrier" not in l and "vmcnt" not in l]
    if "nodma" in X: body = [l for l in body if "lds" not in l]
    a.L[loop_start:] = body
    a("s_cbranch_scc1 A_LOOP")
    stamp(a, 3)
    a(f"""
    s_waitcnt lgkmcnt(0)
    v_cvt_pk_bf16_f32 v{P+7}, v{SB+14}, v{SB+15}
    s_nop 1
    v_mfma_f32_32x32x16_bf16 {vr(O,16)}, {vr(V1,4)}, {vr(P+4,4)}, {vr(O,16)}
    s_nop 11
    v_mov_b32 v6, v{O+8}
    v_mov_b32 v7, v{O+8}
    s_nop 1
    v_permlane32_swap_b32 v6, v7
    v_rcp_f32 v6, v7
    s_mov_b32 s29, 0x71800000                ; 2^100
    v_cmp_nlt_f32 s[48:49], v7, s29          ; !(l < 2^100)
    """)
    for i in range(12): a(f"v_mul_f32 v{O+i}, v{O+i}, v6")
    a(f"v_mul_f32 v7, 0, v{O}")
    for i in range(1, 12): a(f"v_fmac_f32 v7, 0, v{O+i}")
    for i in range(6): a(f"v_cvt_pk_bf16_f32 v{P+i}, v{O+2*i}, v{O+2*i+1}")
    a(f"""
    v_cmp_u_f32 vcc, v7, v7
    s_cmp_lg_u32 s44, 0
    s_cbranch_scc1 A_STORE
    v_mov_b32 v19, {VOTE}
    s_nop 0
    s_or_b64 vcc, vcc, s[48:49]
    s_cbranch_scc0 A_VOTED
    v_mov_b32 v18, 1
    ds_write_b32 v19, v18
    A_VOTED:
    s_waitcnt lgkmcnt(0)
    s_barrier
    ds_read_b32 v18, v19
    s_waitcnt lgkmcnt(0)
    v_readfirstlane_b32 s29, v18
    s_nop 3
    s_cmp_eq_u32 s29, 0
    s_cbranch_scc1 A_STORE
    """)
    a(f"""
    s_barrier
    s_add_u32 s47, s23, 80
    s_lshl_b32 s47, s47, 15
    s_add_u32 s48, s24, 80
    s_lshl_b32 s48, s48, 15
    v_xor_b32 v6, s22, v3
    v_lshl_add_u32 v6, v6, 3, v4
    v_mov_b32 v7, 0xff800000
    s_mov_b32 s46, 64
    A_FB:
    buffer_load_dwordx2 {vr(K1,2)}, v6, {sr(SWS,4)}, s48 offen
    buffer_load_dwordx4 {vr(K0,4)}, v5, {sr(SWS,4)}, s47 offen
    s_add_u32 s47, s47, 512
    s_add_u32 s48, s48, 512
    s_waitcnt vmcnt(0)
    v_mfma_f32_32x32x8_bf16 {vr(SA,16)}, {vr(K1,2)}, {vr(Q1,2)}, 0
    v_mfma_f32_32x32x16_bf16 {vr(SA,16)}, {vr(K0,4)}, {vr(Q0,4)}, {vr(SA,16)}
    s_nop 11
    """)
    for i in range(0, 16, 2): a(f"v_max3_f32 v7, v7, v{SA+i}, v{SA+i+1}")
    a(f"""
    s_sub_u32 s46, s46, 1
    s_cmp_lg_u32 s46, 0
    s_cbranch_scc1 A_FB
    v_mov_b32 v6, v7
    s_nop 1
    v_permlane32_swap_b32 v6, v7
    v_max_f32 v6, v6, v7
    """)
    for i in range(16): a(f"v_sub_f32 v{NEGM+i}, 0, v6")
    a("s_mov_b32 s44, 1")
    a("s_branch A_PASS")
    a(f"""
    A_STORE:
    v_lshlrev_b32 v6, 3, v2
    v_lshl_add_u32 v6, v3, 14, v6            ; hh*16384 + q*8
    s_mul_i32 s29, s16, {5*16384}
    s_lshr_b32 s47, s50, 1
    s_add_u32 s29, s29, s47
    s_add_u32 s29, s29, {WS_O}
    s_add_u32 s47, s29, 32768
    s_add_u32 s48, s29, 65536
    buffer_store_dwordx2 {vr(P,2)}, v6, {sr(SWS,4)}, s29 offen
    buffer_store_dwordx2 {vr(P+2,2)}, v6, {sr(SWS,4)}, s47 offen
    s_mov_b64 exec, 0xffffffff
    buffer_store_dwordx2 {vr(P+4,2)}, v6, {sr(SWS,4)}, s48 offen
    s_mov_b64 exec, -1
    """)
    stamp(a, 4)
    stamp_flush(a, 1, SWS, "s18", sel=(0, 2, 3, 7), slot=5)
    a("s_endpgm")
```

```python
from common import *
import math
LOG2E = math.log2(math.e)
SXB, SBW, SCR, SCI, SOUT = 4, 8, 20, 24, 28
RE, IM = 64, 80
LR, LI, L16R, L16I, L128R, L128I, COR, COI = 96, 97, 98, 99, 100, 101, 102, 103
XA = 104
DV = 112
HR, HI = 113, 114
T0, T1 = 115, 116
def cmul_acc(a, dr, di, lr, li, ar, ai, tmp):
    a(f"v_fma_f32 v{tmp}, v{lr}, v{dr}, v{ar}")
    a(f"v_fma_f32 v{tmp+1}, v{lr}, v{di}, v{ai}")
    a(f"v_fma_f32 v{tmp}, -v{li}, v{di}, v{tmp}")
    a(f"v_fma_f32 v{di}, v{li}, v{dr}, v{tmp+1}")
    a(f"v_mov_b32 v{dr}, v{tmp}")
def csq(a, dr, di, sr_, si, tmp):
    a(f"v_mul_f32 v{tmp}, v{si}, v{si}")
    a(f"v_mul_f32 v{tmp+1}, v{sr_}, v{si}")
    a(f"v_fma_f32 v{dr}, v{sr_}, v{sr_}, -v{tmp}")
    a(f"v_add_f32 v{di}, v{tmp+1}, v{tmp+1}")
def gen_ssm(a, SWS):
    a(f"s_setprio {os.environ.get('BPRIO', '3')}")
    a("""
    s_sub_u32 s41, s2, 256
    s_and_b32 s16, s41, 7
    s_lshl_b32 s16, s16, 1
    s_bfe_u32 s42, s41, 0x10003
    s_add_u32 s16, s16, s42          ; rb
    s_lshr_b32 s17, s41, 4           ; cg
    s_and_b32 s19, s18, 3            ; wr
    s_lshr_b32 s40, s18, 2           ; wc
    s_bfe_u32 s42, s18, 0x10001
    s_lshl_b32 s42, s42, 3
    s_add_u32 s42, s42, 48
    """)
    a(f"s_load_dwordx2 {sr(SXB,2)}, s[0:1], {KA['xB']}")
    a(f"s_load_dwordx2 {sr(SBW,2)}, s[0:1], s42")
    load_ptrs(a, [("Cre", SCR), ("Cim", SCI), ("out", SOUT)])
    a(f"s_load_dwordx4 s[32:35], s[0:1], {KA['Lre']}")
    a(f"s_load_dwordx4 s[36:39], s[0:1], {KA['logdt']}")
    finish_srds(a, [("xB", SXB), ("Bre", SBW), ("Cre", SCR), ("Cim", SCI), ("out", SOUT)])
    a("""
    v_lshrrev_b32 v2, 3, v1          ; r
    v_and_b32 v3, 7, v1
    v_lshrrev_b32 v4, 1, v2
    v_xor_b32 v3, v3, v4
    v_lshlrev_b32 v3, 4, v3
    v_mul_u32_u24 v4, 1280, v2
    v_add_u32 v12, v4, v3
    v_xor_b32 v13, 64, v12
    v_lshrrev_b32 v4, 2, v2
    v_lshlrev_b32 v4, 4, v4
    v_and_b32 v5, 3, v2
    v_add_u32 v4, v4, v5
    v_mul_u32_u24 v4, 1280, v4
    v_add_u32 v10, v4, v3
    v_xor_b32 v11, 64, v10
    s_lshl_b32 s43, s16, 7
    s_lshr_b32 s42, s18, 1
    s_lshl_b32 s42, s42, 5
    s_add_u32 s43, s43, s42
    s_and_b32 s42, s18, 1
    s_lshl_b32 s44, s42, 3
    s_add_u32 s43, s43, s44
    s_mul_i32 s43, s43, 1280
    s_lshl_b32 s44, s17, 6
    s_lshl_b32 s45, s40, 5
    s_add_u32 s46, s44, s45
    s_lshl_b32 s42, s42, 4
    s_add_u32 s44, s46, s42
    s_mul_i32 s44, s44, 1280
    s_lshl_b32 s45, s18, 11
    v_and_b32 v14, 31, v1
    v_lshrrev_b32 v15, 5, v1
    s_waitcnt lgkmcnt(0)
    """)
    def unit(u):
        slot = (u % 5) * 16384; st = u // 2
        if u % 2 == 0:
            a(f"s_add_u32 m0, s45, {slot}")
            a(f"s_add_u32 s42, s43, {st*128}")
            a(f"buffer_load_dwordx4 v10, {sr(SXB,4)}, s42 offen lds")
            a(f"s_add_u32 m0, s45, {slot+1024}")
            a(f"s_add_u32 s42, s43, {st*128+4*1280}")
            a(f"buffer_load_dwordx4 v11, {sr(SXB,4)}, s42 offen lds")
        else:
            a(f"s_add_u32 m0, s45, {slot}")
            a(f"s_add_u32 s42, s44, {st*128}")
            a(f"buffer_load_dwordx4 v12, {sr(SBW,4)}, s42 offen lds")
            a(f"s_add_u32 m0, s45, {slot+1024}")
            a(f"s_add_u32 s42, s44, {st*128+8*1280}")
            a(f"buffer_load_dwordx4 v13, {sr(SBW,4)}, s42 offen lds")
    a(f"""
    v_add_u32 v2, s46, v14
    v_lshlrev_b32 v2, 1, v2
    global_load_ushort v4, v2, s[32:33]
    global_load_ushort v5, v2, s[34:35]
    global_load_ushort v6, v2, s[36:37]
    global_load_ushort v{DV}, v2, s[38:39]
    """)
    for u in range(5): unit(u)
    a(f"""
    v_bfe_u32 v2, v1, 1, 3
    v_xor_b32 v2, v2, v15
    v_lshlrev_b32 v2, 4, v2
    v_lshl_add_u32 v2, v14, 7, v2
    s_lshl_b32 s42, s19, 12
    v_add_u32 v16, s42, v2
    s_lshl_b32 s42, s40, 13
    v_add_u32 v24, s42, v2
    """)
    for ks in range(1, 4):
        a(f"v_xor_b32 v{16+ks}, {32*ks}, v16")
        a(f"v_xor_b32 v{24+ks}, {32*ks}, v24")
    for ks in range(4):
        a(f"v_add_u32 v{20+ks}, 0x10000, v{16+ks}")
        a(f"v_add_u32 v{28+ks}, 0x10000, v{24+ks}")
    for i in range(32): a(f"v_mov_b32 v{RE+i}, 0")
    a(f"""
    s_waitcnt vmcnt(10)
    v_lshlrev_b32 v4, 16, v4         ; Lre
    v_lshlrev_b32 v5, 16, v5         ; Lim
    v_lshlrev_b32 v6, 16, v6
    v_mul_f32 v6, {f32(LOG2E)}, v6
    v_exp_f32 v6, v6
    s_nop 0
    v_cvt_pk_bf16_f32 v6, v6, v6
    v_lshlrev_b32 v6, 16, v6
    v_mul_f32 v7, v6, v4             ; zr
    v_mul_f32 v8, v6, v5             ; zi
    v_mul_f32 v7, {f32(LOG2E)}, v7
    v_mul_f32 v8, {f32(1/(2*math.pi))}, v8
    v_exp_f32 v7, v7
    v_fract_f32 v8, v8
    v_cos_f32 v9, v8
    v_sin_f32 v8, v8
    v_mul_f32 v{LR}, v7, v9
    v_mul_f32 v{LI}, v7, v8
    v_mul_f32 v6, v4, v4
    v_fmac_f32 v6, v5, v5
    v_rcp_f32 v6, v6
    v_subrev_f32 v7, 1.0, v{LR}
    v_add_f32 v6, v6, v6             ; 2/|L|^2
    v_mul_f32 v8, v7, v4
    v_fmac_f32 v8, v{LI}, v5
    v_mul_f32 v9, v{LI}, v4
    v_fma_f32 v9, -v7, v5, v9
    v_mul_f32 v{COR}, v8, v6
    v_mul_f32 v{COI}, v9, v6
    """)
    csq(a, L16R, L16I, LR, LI, T0)
    for _ in range(3): csq(a, L16R, L16I, L16R, L16I, T0)
    csq(a, L128R, L128I, L16R, L16I, T0)
    for _ in range(2): csq(a, L128R, L128I, L128R, L128I, T0)
    stamp(a, 1)
    F = [32, 44]
    def reads(st, ks, fs):
        sx = (2 * st) % 5; sb = (2 * st + 1) % 5
        ax = (20 if sx == 4 else 16) + ks; ox = 0 if sx == 4 else sx * 16384
        ab = (28 if sb == 4 else 24) + ks; ob = 0 if sb == 4 else sb * 16384
        a(f"ds_read_b128 {vr(F[fs],4)}, v{ax} offset:{ox}")
        a(f"ds_read_b128 {vr(F[fs]+4,4)}, v{ab} offset:{ob}")
        a(f"ds_read_b128 {vr(F[fs]+8,4)}, v{ab} offset:{ob+4096}")
    def mf(fs):
        a(f"v_mfma_f32_32x32x16_bf16 {vr(RE,16)}, {vr(F[fs],4)}, {vr(F[fs]+4,4)}, {vr(RE,16)}")
        a(f"v_mfma_f32_32x32x16_bf16 {vr(IM,16)}, {vr(F[fs],4)}, {vr(F[fs]+8,4)}, {vr(IM,16)}")
    for st in range(10):
        a(f"s_waitcnt vmcnt({6 if st == 0 else (0 if st == 9 else 2)})")
        a("s_barrier")
        reads(st, 0, 0)
        reads(st, 1, 1)
        if st >= 1:
            for u in (2 * st + 3, 2 * st + 4):
                if u < 20: unit(u)
        a("s_waitcnt lgkmcnt(3)"); mf(0); reads(st, 2, 0)
        a("s_waitcnt lgkmcnt(3)"); mf(1); reads(st, 3, 1)
        a("s_waitcnt lgkmcnt(3)"); mf(0)
        a("s_waitcnt lgkmcnt(0)"); mf(1)
    stamp(a, 2)
    a(f"""
    s_lshl_b32 s42, s16, 7
    s_lshl_b32 s47, s19, 5
    s_add_u32 s47, s47, s42
    s_mul_i32 s48, s47, 1280
    s_lshl_b32 s42, s46, 1
    s_add_u32 s48, s48, s42
    v_mul_u32_u24 v2, 1280, v14
    v_lshl_add_u32 v2, v15, 4, v2
    buffer_load_dwordx4 {vr(XA,4)}, v2, {sr(SXB,4)}, s48 offen
    buffer_load_dwordx4 {vr(XA+4,4)}, v2, {sr(SXB,4)}, s48 offen offset:32
    s_nop 3
    """)
    for r in range(0, 16, 2):
        t = 32 + 2 * ((r // 2) & 3)
        a(f"v_pk_mul_f32 {vr(t,2)}, {vr(IM+r,2)}, {vr(COR,2)} op_sel:[0,1] op_sel_hi:[1,1]")
        a(f"v_pk_mul_f32 {vr(IM+r,2)}, {vr(IM+r,2)}, {vr(COR,2)} op_sel_hi:[1,0]")
        a(f"v_pk_fma_f32 {vr(IM+r,2)}, {vr(RE+r,2)}, {vr(COR,2)}, {vr(IM+r,2)} op_sel:[0,1,0] op_sel_hi:[1,1,1]")
        a(f"v_pk_fma_f32 {vr(RE+r,2)}, {vr(RE+r,2)}, {vr(COR,2)}, {vr(t,2)} op_sel_hi:[1,0,1] neg_lo:[0,0,1] neg_hi:[0,0,1]")
    g = [(32, 33), (34, 35)]
    pr, pi = RE, IM
    for r in range(1, 16):
        dr, di = g[r & 1]
        a(f"v_fma_f32 v{dr}, v{LR}, v{pr}, v{RE+r}")
        a(f"v_fma_f32 v{di}, v{LR}, v{pi}, v{IM+r}")
        a(f"v_fma_f32 v{dr}, -v{LI}, v{pi}, v{dr}")
        a(f"v_fma_f32 v{di}, v{LI}, v{pr}, v{di}")
        pr, pi = dr, di
    assert (pr, pi) == (34, 35)
    a(f"""
    s_lshl_b32 s42, s40, 8
    v_lshl_add_u32 v3, v14, 3, s42           ; (32wc+ch)*8
    s_lshl_b32 s42, s19, 10
    v_lshl_add_u32 v4, v15, 9, v3
    v_add_u32 v4, s42, v4
    ds_write_b64 v4, v[34:35]
    s_waitcnt lgkmcnt(0)
    s_barrier
    """)
    for s_ in range(8): a(f"ds_read_b64 {vr(36+2*s_,2)}, v3 offset:{s_*512}")
    a(f"""
    s_cmp_lg_u32 s19, 0
    s_cbranch_scc1 B_NOLB
    s_waitcnt lgkmcnt(0)
    v_mov_b32 v52, v36
    v_mov_b32 v53, v37
    """)
    for s_ in range(1, 8): cmul_acc(a, 52, 53, L16R, L16I, 36 + 2 * s_, 37 + 2 * s_, T0)
    a(f"""
    v_mov_b32 v54, 1
    v_mov_b32 v55, 1
    v_add_u32 v4, s46, v14
    v_lshlrev_b32 v4, 4, v4                  ; p*16
    s_mul_i32 s42, s16, 10240
    s_add_u32 s42, s42, {WS_E}
    s_mov_b64 exec, 0xffffffff
    buffer_store_dwordx4 v[52:55], v4, {sr(SWS,4)}, s42 offen sc1
    s_mov_b64 exec, -1
    v_mov_b32 v{HR}, 0
    v_mov_b32 v{HI}, 0
    s_cmp_eq_u32 s16, 0
    s_cbranch_scc1 B_LBDONE
    v_mul_u32_u24 v5, 81920, v15
    v_add_u32 v4, v4, v5                     ; + hh*8*10240
    s_mov_b32 s54, 0x100000
    B_LBPOLL:
    """)
    G = 4
    GR = [16, 20, 24, 28, 56, 60, 120, 124]
    for i in range(8):
        a(f"s_mov_b32 s42, {WS_E + i*10240}")
        a(f"buffer_load_dwordx4 {vr(GR[i],4)}, v4, {sr(SWS,4)}, s42 offen sc1")
    a("s_mov_b64 s[50:51], 0")
    a("s_waitcnt vmcnt(0)")
    for i in range(8):
        a(f"""
        v_cmp_ne_u32 vcc, 1, v{GR[i]+2}
        s_cmp_gt_u32 s16, {i}
        s_cselect_b32 s52, -1, 0
        s_cmp_gt_u32 s16, {i+8}
        s_cselect_b32 s53, -1, 0
        s_and_b64 vcc, vcc, s[52:53]
        s_or_b64 s[50:51], s[50:51], vcc
        """)
    a(f"""
    s_cmp_eq_u64 s[50:51], 0
    s_cbranch_scc1 B_LBOK
    s_sleep 8
    s_sub_u32 s54, s54, 1
    s_cmp_lg_u32 s54, 0
    s_cbranch_scc1 B_LBPOLL
    B_LBOK:
    s_mov_b32 s42, s16
    s_mov_b64 exec, 0xffffffff
    B_LBROUND:
    """)
    for i in range(8):
        a(f"s_cmp_le_i32 s42, {i}")
        a("s_cbranch_scc1 B_LBNEXT")
        cmul_acc(a, HR, HI, L128R, L128I, GR[i], GR[i] + 1, T0)
    a(f"""
    B_LBNEXT:
    s_cmp_eq_u32 exec_lo, 0
    s_cbranch_scc1 B_LBFIN
    s_mov_b64 exec, -1
    v_mov_b32 v{T0}, v{HR}
    v_mov_b32 v{T1}, v{HI}
    s_nop 1
    v_permlane32_swap_b32 v{HR}, v{T0}
    v_permlane32_swap_b32 v{HI}, v{T1}
    s_sub_u32 s42, s42, 8
    s_mov_b32 exec_lo, 0
    s_branch B_LBROUND
    B_LBFIN:
    s_mov_b64 exec, -1
    B_LBDONE:
    s_mov_b32 exec_lo, 0
    v_mov_b32 v52, v{HR}
    v_mov_b32 v53, v{HI}
    ds_write_b64 v3, v[52:53] offset:4096
    s_mov_b64 exec, -1
    B_NOLB:
    s_waitcnt lgkmcnt(0)
    s_barrier
    ds_read_b64 v[52:53], v3 offset:4096
    s_waitcnt lgkmcnt(0)
    """)
    stamp(a, 3)
    for s_ in range(6):
        if s_ % 2 == 0:
            a(f"s_cmp_le_u32 s19, {s_//2}")
            a("s_cbranch_scc1 B_PFX")
        cmul_acc(a, 52, 53, L16R, L16I, 36 + 2 * s_, 37 + 2 * s_, T0)
    a("B_PFX:")
    a(f"""
    s_lshl_b32 s42, s19, 10
    v_add_u32 v4, s42, v3
    ds_read_b64 v[54:55], v4
    s_mov_b32 exec_lo, 0
    s_waitcnt lgkmcnt(0)
    """)
    cmul_acc(a, 52, 53, L16R, L16I, 54, 55, T0)
    a("s_mov_b64 exec, -1")
    a("s_barrier")
    ABASE = 24576; AST = 17408
    a(f"""
    s_lshl_b32 s42, s17, 6
    s_lshl_b32 s44, s18, 3
    s_add_u32 s44, s44, s42
    s_mul_i32 s44, s44, 1280
    s_lshl_b32 s45, s18, 10
    s_and_b32 s42, s18, 1
    s_lshl_b32 s42, s42, 6
    v_xor_b32 v12, s42, v12
    s_mul_i32 s49, s18, 2176
    s_add_u32 s49, s49, {ABASE}
    s_lshl_b32 s43, s16, 4
    s_lshl_b32 s42, s18, 1
    s_add_u32 s43, s43, s42
    s_mul_i32 s43, s43, 20480
    s_add_u32 s43, s43, {WS_H}
    v_lshlrev_b32 v10, 4, v1
    """)
    def dmaB(st):
        srd = SCR if st < 10 else SCI
        a(f"s_add_u32 m0, s45, {(st%3)*8192}")
        a(f"s_add_u32 s42, s44, {(st%10)*128}")
        a(f"buffer_load_dwordx4 v12, {sr(srd,4)}, s42 offen lds")
    def dmaA(st):
        for q in range(2):
            a(f"s_add_u32 m0, s49, {(st%3)*AST + q*1088}")
            a(f"s_add_u32 s42, s43, {st*1024 + q*20480}")
            a(f"buffer_load_dwordx4 v10, {sr(SWS,4)}, s42 offen lds")
    dmaB(0); dmaB(1)
    pr, pi = 52, 53
    for r in range(16):
        a(f"v_fma_f32 v{RE+r}, v{LR}, v{pr}, v{RE+r}")
        a(f"v_fma_f32 v{IM+r}, v{LR}, v{pi}, v{IM+r}")
        a(f"v_fma_f32 v{RE+r}, -v{LI}, v{pi}, v{RE+r}")
        a(f"v_fma_f32 v{IM+r}, v{LI}, v{pr}, v{IM+r}")
        pr, pi = RE + r, IM + r
    for i in range(8):
        a(f"v_cvt_pk_bf16_f32 v{32+i}, v{RE+2*i}, v{RE+2*i+1}")
        a(f"v_cvt_pk_bf16_f32 v{40+i}, -v{IM+2*i}, -v{IM+2*i+1}")
    a(f"""
    v_add_u32 v4, s46, v14
    v_lshlrev_b32 v4, 4, v4
    v_mul_u32_u24 v5, {2*20480}, v15
    v_add_u32 v4, v4, v5
    s_lshl_b32 s42, s16, 4
    s_lshl_b32 s48, s19, 2
    s_add_u32 s42, s42, s48
    s_mul_i32 s42, s42, 20480
    s_add_u32 s42, s42, {WS_H}
    s_add_u32 s48, s42, 20480
    s_add_u32 s50, s42, 10240
    s_add_u32 s51, s42, 30720
    buffer_store_dwordx4 v[32:35], v4, {sr(SWS,4)}, s42 offen sc1
    buffer_store_dwordx4 v[36:39], v4, {sr(SWS,4)}, s48 offen sc1
    buffer_store_dwordx4 v[40:43], v4, {sr(SWS,4)}, s50 offen sc1
    buffer_store_dwordx4 v[44:47], v4, {sr(SWS,4)}, s51 offen sc1
    """)
    a(f"""
    v_bfe_u32 v2, v1, 4, 1
    v_bfe_u32 v3, v1, 1, 1
    v_lshl_add_u32 v2, v2, 1, v3
    s_lshl_b32 s42, s19, 2
    v_add_u32 v2, s42, v2
    v_mul_u32_u24 v2, 1088, v2
    v_bfe_u32 v3, v1, 2, 2
    v_lshl_add_u32 v3, v15, 3, v3
    v_lshl_add_u32 v2, v3, 4, v2
    v_and_b32 v3, 1, v1
    v_lshl_add_u32 v2, v3, 3, v2
    v_add_u32 v16, {ABASE}, v2
    v_bfe_u32 v2, v1, 1, 3
    v_xor_b32 v2, v2, v15
    v_lshlrev_b32 v2, 4, v2
    v_lshl_add_u32 v2, v14, 7, v2
    s_lshl_b32 s42, s40, 12
    v_add_u32 v24, s42, v2
    v_xor_b32 v25, 32, v24
    v_xor_b32 v26, 64, v24
    v_xor_b32 v27, 96, v24
    v_and_b32 v2, 1, v14
    v_lshlrev_b32 v2, 4, v2
    v_lshlrev_b32 v{DV}, v2, v{DV}           ; D << 16*(n&1)
    v_lshlrev_b32 v2, 3, v15
    v_sub_u32 v2, v14, v2
    v_ashrrev_i32 v2, 1, v2                  ; (n-8hh)>>1
    """)
    for s_ in range(2):
        for q in range(4):
            a(f"v_cmp_eq_u32 vcc, {8*s_+q}, v2")
            a("s_nop 1")
            a(f"v_cndmask_b32 v{48+4*s_+q}, 0, v{DV}, vcc")
    a(f"""
    s_waitcnt vmcnt(0)
    v_mfma_f32_32x32x16_bf16 {vr(RE,16)}, {vr(XA,4)}, v[48:51], 0
    v_mfma_f32_32x32x16_bf16 {vr(RE,16)}, {vr(XA+4,4)}, v[52:55], {vr(RE,16)}
    s_barrier
    s_cmp_lg_u32 s18, 0
    s_cbranch_scc1 B_HWAIT
    s_lshl_b32 s42, s16, 6
    s_add_u32 s42, s42, {WS_F}
    s_lshl_b32 s48, s17, 2
    v_mov_b32 v2, s48
    v_mov_b32 v3, 1
    s_mov_b64 exec, 1
    buffer_store_dword v3, v2, {sr(SWS,4)}, s42 offen sc1
    s_mov_b64 exec, 0x3ff
    v_lshlrev_b32 v2, 2, v1
    s_mov_b32 s54, 0x100000
    B_HPOLL:
    buffer_load_dword v3, v2, {sr(SWS,4)}, s42 offen sc1
    s_waitcnt vmcnt(0)
    v_cmp_ne_u32 vcc, 1, v3
    s_cbranch_vccz B_HOK
    s_sleep 8
    s_sub_u32 s54, s54, 1
    s_cmp_lg_u32 s54, 0
    s_cbranch_scc1 B_HPOLL
    B_HOK:
    s_mov_b64 exec, -1
    buffer_inv sc1
    s_waitcnt vmcnt(0)
    B_HWAIT:
    s_barrier
    """)
    stamp(a, 4)
    dmaA(0); dmaA(1)
    F2 = [32, 40]
    def reads2(st, ks, fs):
        sl = st % 3
        for kk in range(2):
            a(f"ds_read_b64_tr_b16 {vr(F2[fs]+2*kk,2)}, v16 offset:{sl*AST + (16*ks+4*kk)*16}")
        a(f"ds_read_b128 {vr(F2[fs]+4,4)}, v{24+ks} offset:{sl*8192}")
    def mf2(fs):
        a(f"v_mfma_f32_32x32x16_bf16 {vr(RE,16)}, {vr(F2[fs],4)}, {vr(F2[fs]+4,4)}, {vr(RE,16)}")
    for st in range(20):
        a(f"s_waitcnt vmcnt({2 if st == 0 else (0 if st == 19 else 3)})")
        a("s_barrier")
        reads2(st, 0, 0); reads2(st, 1, 1)
        if st + 2 < 20: dmaB(st + 2); dmaA(st + 2)
        a("s_waitcnt lgkmcnt(3)"); mf2(0); reads2(st, 2, 0)
        a("s_waitcnt lgkmcnt(3)"); mf2(1); reads2(st, 3, 1)
        a("s_waitcnt lgkmcnt(3)"); mf2(0)
        a("s_waitcnt lgkmcnt(0)"); mf2(1)
    stamp(a, 5)
    a(f"""
    v_mul_u32_u24 v2, {4*5120}, v15
    v_lshl_add_u32 v2, v14, 2, v2
    s_mul_i32 s42, s47, 5120
    s_lshl_b32 s48, s46, 2
    s_add_u32 s42, s42, s48
    s_add_u32 s42, s42, 2560
    s_nop 7
    """)
    for r in range(16):
        a(f"s_add_u32 s48, s42, {(8*(r>>2)+(r&3))*5120}")
        a(f"buffer_store_dword v{RE+r}, v2, {sr(SOUT,4)}, s48 offen")
    stamp_flush(a, 1, SWS, "s18", sel=(0, 2, 7), slot=9)
    a("s_endpgm")
```

```python
from common import *
def gen_k3():
    a = A()
    SWO, SWS, SOUT = 4, 12, 8
    pairs = [("wo", SWO), ("ws", SWS), ("out", SOUT)]
    NSL = 4; SL = 24576
    a("s_cmp_ge_u32 s2, 160")
    a("s_cbranch_scc1 K3_END")
    stamp_init(a); stamp(a, 0)
    load_ptrs(a, pairs)
    a(f"""
    v_lshrrev_b32 v1, 6, v0
    s_and_b32 s16, s2, 7
    s_lshl_b32 s16, s16, 1
    v_readfirstlane_b32 s18, v1
    s_bfe_u32 s42, s2, 0x10003
    s_add_u32 s16, s16, s42          ; rb
    s_lshr_b32 s17, s2, 4            ; cg
    v_and_b32 v1, 63, v0
    s_and_b32 s19, s18, 3            ; wr
    s_lshr_b32 s40, s18, 2           ; wc
    v_lshlrev_b32 v10, 4, v1
    v_lshrrev_b32 v2, 3, v1
    v_and_b32 v3, 7, v1
    v_bfe_u32 v4, v1, 4, 1
    v_lshlrev_b32 v4, 2, v4
    v_xor_b32 v3, v3, v4
    v_lshlrev_b32 v3, 4, v3
    v_mul_u32_u24 v2, 1280, v2
    v_add_u32 v12, v2, v3
    s_lshl_b32 s43, s18, 15          ; quad 2w * 16384
    s_lshl_b32 s42, s16, 10
    s_add_u32 s43, s43, s42
    s_add_u32 s43, s43, {WS_O}
    s_mul_i32 s44, s18, 8*1280
    s_lshl_b32 s42, s17, 7
    s_add_u32 s44, s44, s42
    s_lshl_b32 s45, s18, 11
    s_lshl_b32 s49, s18, 10
    s_add_u32 s49, s49, 16384
    """)
    finish_srds(a, pairs)
    a("s_waitcnt lgkmcnt(0)")
    def dma(st):
        sl = (st % NSL) * SL
        a(f"s_add_u32 m0, s49, {sl}")
        a(f"s_add_u32 s42, s44, {st*64*1280}")
        a(f"buffer_load_dwordx4 v12, {sr(SWO,4)}, s42 offen lds")
        for q in range(2):
            a(f"s_add_u32 m0, s45, {sl + q*1024}")
            a(f"s_add_u32 s42, s43, {(st*16+q)*16384}")
            a(f"buffer_load_dwordx4 v10, {sr(SWS,4)}, s42 offen lds")
    for st in range(3): dma(st)
    a(f"""
    v_and_b32 v14, 31, v1
    v_lshrrev_b32 v15, 5, v1
    s_lshl_b32 s42, s19, 8
    v_lshl_add_u32 v16, v14, 3, s42
    v_lshl_add_u32 v16, v15, 11, v16
    v_bfe_u32 v2, v1, 4, 1
    v_bfe_u32 v3, v1, 1, 1
    v_lshl_add_u32 v2, v2, 1, v3
    s_lshl_b32 s42, s40, 2
    v_add_u32 v2, s42, v2                    ; chunk
    v_bfe_u32 v3, v1, 3, 1
    v_lshlrev_b32 v3, 2, v3
    v_xor_b32 v2, v2, v3
    v_bfe_u32 v3, v1, 2, 2
    v_lshl_add_u32 v3, v15, 3, v3
    v_lshlrev_b32 v3, 7, v3
    v_lshl_add_u32 v2, v2, 4, v3
    v_and_b32 v3, 1, v1
    v_lshl_add_u32 v2, v3, 3, v2
    v_add_u32 v17, 16384, v2
    v_add_u32 v18, {2*SL}, v17
    """)
    ACC = 32
    for i in range(16): a(f"v_mov_b32 v{ACC+i}, 0")
    F = [48, 56]
    def reads(st, ks, fs):
        sl = st % NSL
        o0 = (sl * SL + 4 * ks * 1024) // 512
        a(f"ds_read2st64_b64 {vr(F[fs],4)}, v16 offset0:{o0} offset1:{o0+2}")
        for kk in range(2):
            a(f"ds_read_b64_tr_b16 {vr(F[fs]+4+2*kk,2)}, v{17 + sl//2} offset:{(sl&1)*SL + (16*ks+4*kk)*128}")
    def mf(fs):
        a(f"v_mfma_f32_32x32x16_bf16 {vr(ACC,16)}, {vr(F[fs],4)}, {vr(F[fs]+4,4)}, {vr(ACC,16)}")
    stamp(a, 1)
    for st in range(10):
        a(f"s_waitcnt vmcnt({3*min(2, 9-st)})")
        a("s_barrier")
        if st == 0: stamp(a, 2)
        reads(st, 0, 0); reads(st, 1, 1)
        if st + 3 < 10: dma(st + 3)
        a("s_waitcnt lgkmcnt(3)"); mf(0); reads(st, 2, 0)
        a("s_waitcnt lgkmcnt(3)"); mf(1); reads(st, 3, 1)
        a("s_waitcnt lgkmcnt(3)"); mf(0)
        a("s_waitcnt lgkmcnt(0)"); mf(1)
    stamp(a, 3)
    a(f"""
    v_mul_u32_u24 v2, {4*5120}, v15
    v_lshl_add_u32 v2, v14, 2, v2
    s_lshl_b32 s42, s16, 7
    s_lshl_b32 s47, s19, 5
    s_add_u32 s47, s47, s42
    s_mul_i32 s42, s47, 5120
    s_lshl_b32 s48, s17, 8
    s_add_u32 s42, s42, s48
    s_lshl_b32 s48, s40, 7
    s_add_u32 s42, s42, s48
    s_nop 3
    """)
    for r in range(16):
        a(f"s_add_u32 s48, s42, {(8*(r>>2)+(r&3))*5120}")
        a(f"buffer_store_dword v{ACC+r}, v2, {sr(SOUT,4)}, s48 offen")
    stamp(a, 4)
    stamp_flush(a, 2, SWS, "s18", sel=(0, 2, 3, 7), slot=12)
    a("K3_END:")
    a("s_endpgm")
    return a.text(), 64
```

```python
import sys, os
sys.path.insert(0, os.path.dirname(__file__))
from common import *
import hazcheck
HEADER = open("concat_heads__softmax_full_mha__ssm_conv_s5__prompt.s.ref").read().split("; Override launch")[0]
def assemble(kernels):
    t = HEADER
    for name, body, nv, g, b, lds in kernels:
        t += f"; @launch kernel={name} grid=({g},1,1) block=({b},1,1) lds={lds}\n"
    t += '.amdgcn_target "amdgcn-amd-amdhsa--gfx950"\n.text\n'
    for name, body, nv, g, b, lds in kernels:
        errs = hazcheck.check(body)
        if errs:
            print(f"HAZARDS in {name}:"); print("\n".join(errs[:40]))
        t += kernel_head(name) + body
    t += '.section .rodata,"a"\n'
    for name, body, nv, g, b, lds in kernels:
        t += kernel_desc(name, nv)
    return t
if __name__ == "__main__":
    which = sys.argv[1] if len(sys.argv) > 1 else "123"
    ks = []
    if "1" in which:
        import k1; from k1 import gen_k1
        b, nv = gen_k1(); ks.append(("k1_qkv_kernel", b, nv, 256, 512, 32768 * k1.NS))
    if "2" in which:
        import k2; from k2 import gen_k2
        b, nv = gen_k2(); ks.append(("k2_attn_kernel", b, nv, k2.NWG, 512, 81920))
    if "3" in which:
        from k3 import gen_k3
        b, nv = gen_k3(); ks.append(("k3_wo_kernel", b, nv, 160, 512, 98304))
    out = sys.argv[2] if len(sys.argv) > 2 else "concat_heads__softmax_full_mha__ssm_conv_s5__prompt.s"
    open(out, "w").write(assemble(ks))
    print("wrote", out)
```

```python
import struct
class A:
    def __init__(self): self.L = []
    def __call__(self, s=""):
        for line in s.split("\n"):
            line = line.strip()
            if line: self.L.append(("" if line.endswith(":") else "    ") + line)
    def c(self, s): self.L.append("    ; " + s)
    def text(self): return "\n".join(self.L) + "\n"
def vr(a, n=1): return f"v{a}" if n == 1 else f"v[{a}:{a+n-1}]"
def sr(a, n=1): return f"s{a}" if n == 1 else f"s[{a}:{a+n-1}]"
def f32(x): return "0x%08x" % struct.unpack("<I", struct.pack("<f", x))[0]

KA = dict(xA=0, wqkv=8, wo=16, xB=24, Lre=32, Lim=40, Bre=48, Bim=56, Cre=64, Cim=72, logdt=80, Dskip=88, out=96, dbg=104, ws=112)
SZ = dict(xA=2621440, wqkv=2457600, wo=819200, xB=2621440, Lre=1280, Lim=1280, Bre=819200, Bim=819200, Cre=819200, Cim=819200,
          logdt=1280, Dskip=1280, out=10485760, dbg=256, ws=0x1000000)
WS_QK = 0
WS_V  = 0x500000
WS_O  = 0x780000
WS_H  = 0xA00000
WS_E  = 0xF00000
WS_F  = 0xF30000

def load_ptrs(a, pairs):
    for name, s in pairs:
        a(f"s_load_dwordx2 {sr(s,2)}, s[0:1], {KA[name]}")
def finish_srds(a, pairs):
    for name, s in pairs:
        a(f"s_mov_b32 s{s+2}, {SZ[name]}")
        a(f"s_mov_b32 s{s+3}, 0x00020000")
def kernel_head(name):
    return f".globl {name}\n.p2align 8\n.type {name},@function\n{name}:\n"
def kernel_desc(name, nv, ns=96):
    acc = (nv + 3) // 4 * 4
    return f""".p2align 6
.amdhsa_kernel {name}
  .amdhsa_next_free_vgpr {nv}
  .amdhsa_next_free_sgpr {ns}
  .amdhsa_accum_offset {acc}
  .amdhsa_group_segment_fixed_size 0
  .amdhsa_kernarg_size 120
  .amdhsa_user_sgpr_count 2
  .amdhsa_user_sgpr_kernarg_segment_ptr 1
  .amdhsa_system_sgpr_workgroup_id_x 1
.end_amdhsa_kernel
"""

import os
STAMPS = os.environ.get("STAMPS", "0") == "1"
if STAMPS: SZ["ws"] = 0x2000000
DBGST = os.environ.get("DBGST", "0") == "1"
def stamp(a, i):
    if DBGST:
        a(f"s_memrealtime s[{80+2*i}:{81+2*i}]")
        a("s_waitcnt lgkmcnt(0)")
    if STAMPS:
        a(f"s_memrealtime s[{80+2*i}:{81+2*i}]")
        a(f"s_memtime s[{60+2*i}:{61+2*i}]")
        a("s_waitcnt lgkmcnt(0)")
def stamp_init(a):
    if STAMPS:
        for i in range(8): a(f"s_mov_b32 s{80+2*i}, 0")
def stamp_flush(a, kidx, srd, wave_sreg, wg_sreg="s2", sel=(0, 7), slot=None):
    if DBGST:
        a("s_waitcnt vmcnt(0)")
        stamp(a, 7)
        a("s_load_dwordx2 s[76:77], s[0:1], 104")
        a("s_waitcnt lgkmcnt(0)")
        a(f"s_sub_u32 s76, s76, {512*kidx}")
        a("s_subb_u32 s77, s77, 0")
        a("s_mov_b64 exec, 1")
        base = slot if slot is not None else kidx * 2
        for n, i in enumerate(sel):
            a(f"v_mov_b32 v20, {4*(base+n)}")
            if n == 0: a(f"s_not_b32 s{80+2*i}, s{80+2*i}")
            a(f"v_mov_b32 v21, s{80+2*i}")
            a("global_atomic_umax v20, v21, s[76:77]")
            a("s_waitcnt vmcnt(0)")
        a("s_mov_b64 exec, -1")
    if STAMPS:
        a("s_waitcnt vmcnt(0)")
        stamp(a, 7)
        for i in range(8): a(f"v_mov_b32 v{24+i}, s{80+2*i}")
        for i in range(8): a(f"v_mov_b32 v{32+i}, s{60+2*i}")
        a(f"s_lshl_b32 s79, {wg_sreg}, 9")
        a(f"s_lshl_b32 s78, {wave_sreg}, 6")
        a(f"s_add_u32 s79, s79, s78")
        a(f"s_add_u32 s79, s79, {0x1000000 + kidx*0x40000}")
        a("v_mov_b32 v20, 0")
        a("s_mov_b64 exec, 1")
        for j in range(4):
            a(f"buffer_store_dwordx4 v[{24+4*j}:{27+4*j}], v20, {sr(srd,4)}, s79 offen offset:{16*j}")
        a("s_mov_b64 exec, -1")
```

```python
import struct
class A:
    def __init__(self): self.L = []
    def __call__(self, s=""):
        for line in s.split("\n"):
            line = line.strip()
            if line: self.L.append(("" if line.endswith(":") else "    ") + line)
    def c(self, s): self.L.append("    ; " + s)
    def text(self): return "\n".join(self.L) + "\n"
def vr(a, n=1): return f"v{a}" if n == 1 else f"v[{a}:{a+n-1}]"
def sr(a, n=1): return f"s{a}" if n == 1 else f"s[{a}:{a+n-1}]"
def f32(x): return "0x%08x" % struct.unpack("<I", struct.pack("<f", x))[0]

KA = dict(xA=0, wqkv=8, wo=16, xB=24, Lre=32, Lim=40, Bre=48, Bim=56, Cre=64, Cim=72, logdt=80, Dskip=88, out=96, dbg=104, ws=112)
SZ = dict(xA=2621440, wqkv=2457600, wo=819200, xB=2621440, Lre=1280, Lim=1280, Bre=819200, Bim=819200, Cre=819200, Cim=819200,
          logdt=1280, Dskip=1280, out=10485760, dbg=256, ws=0x1000000)
WS_QK = 0
WS_V  = 0x500000
WS_O  = 0x780000
WS_H  = 0xA00000
WS_E  = 0xF00000
WS_F  = 0xF30000

def load_ptrs(a, pairs):
    for name, s in pairs:
        a(f"s_load_dwordx2 {sr(s,2)}, s[0:1], {KA[name]}")
def finish_srds(a, pairs):
    for name, s in pairs:
        a(f"s_mov_b32 s{s+2}, {SZ[name]}")
        a(f"s_mov_b32 s{s+3}, 0x00020000")
def kernel_head(name):
    return f".globl {name}\n.p2align 8\n.type {name},@function\n{name}:\n"
def kernel_desc(name, nv, ns=96):
    acc = (nv + 3) // 4 * 4
    return f""".p2align 6
.amdhsa_kernel {name}
  .amdhsa_next_free_vgpr {nv}
  .amdhsa_next_free_sgpr {ns}
  .amdhsa_accum_offset {acc}
  .amdhsa_group_segment_fixed_size 0
  .amdhsa_kernarg_size 120
  .amdhsa_user_sgpr_count 2
  .amdhsa_user_sgpr_kernarg_segment_ptr 1
  .amdhsa_system_sgpr_workgroup_id_x 1
.end_amdhsa_kernel
"""

import os
STAMPS = os.environ.get("STAMPS", "0") == "1"
if STAMPS: SZ["ws"] = 0x2000000
DBGST = os.environ.get("DBGST", "0") == "1"
def stamp(a, i):
    if DBGST:
        a(f"s_memrealtime s[{80+2*i}:{81+2*i}]")
        a("s_waitcnt lgkmcnt(0)")
    if STAMPS:
        a(f"s_memrealtime s[{80+2*i}:{81+2*i}]")
        a(f"s_memtime s[{60+2*i}:{61+2*i}]")
        a("s_waitcnt lgkmcnt(0)")
def stamp_init(a):
    if STAMPS:
        for i in range(8): a(f"s_mov_b32 s{80+2*i}, 0")
def stamp_flush(a, kidx, srd, wave_sreg, wg_sreg="s2", sel=(0, 7), slot=None):
    if DBGST:
        a("s_waitcnt vmcnt(0)")
        stamp(a, 7)
        a("s_load_dwordx2 s[76:77], s[0:1], 104")
        a("s_waitcnt lgkmcnt(0)")
        a(f"s_add_u32 s76, s76, {512*(2-kidx)}")
        a("s_addc_u32 s77, s77, 0")
        stamp_flush.n = getattr(stamp_flush, "n", 0) + 1
        a(f"s_and_b32 s78, {wave_sreg}, 3")
        a(f"s_cbranch_scc1 DBG_SKIP{stamp_flush.n}")
        a("s_and_b32 s78, s2, 0x70")
        a(f"s_cbranch_scc1 DBG_SKIP{stamp_flush.n}")
        a("s_mov_b64 exec, 1")
        base = slot if slot is not None else kidx * 2
        for n, i in enumerate(sel):
            a(f"v_mov_b32 v20, {4*(base+n)}")
            if n == 0: a(f"s_not_b32 s{80+2*i}, s{80+2*i}")
            a(f"v_mov_b32 v21, s{80+2*i}")
            a("global_atomic_umax v20, v21, s[76:77]")
        a("s_mov_b64 exec, -1")
        a(f"DBG_SKIP{stamp_flush.n}:")
    if STAMPS:
        a("s_waitcnt vmcnt(0)")
        stamp(a, 7)
        for i in range(8): a(f"v_mov_b32 v{24+i}, s{80+2*i}")
        for i in range(8): a(f"v_mov_b32 v{32+i}, s{60+2*i}")
        a(f"s_lshl_b32 s79, {wg_sreg}, 9")
        a(f"s_lshl_b32 s78, {wave_sreg}, 6")
        a(f"s_add_u32 s79, s79, s78")
        a(f"s_add_u32 s79, s79, {0x1000000 + kidx*0x40000}")
        a("v_mov_b32 v20, 0")
        a("s_mov_b64 exec, 1")
        for j in range(4):
            a(f"buffer_store_dwordx4 v[{24+4*j}:{27+4*j}], v20, {sr(srd,4)}, s79 offen offset:{16*j}")
        a("s_mov_b64 exec, -1")
```
